```python
import torch

def _softmax(x, axis=-1):
    return torch.softmax(x, dim=axis)
def _gelu(x):
    return torch.nn.functional.gelu(x, approximate="tanh")
def _silu(x):
    return torch.nn.functional.silu(x)
def _sigmoid(x):
    return torch.sigmoid(x)
def _layernorm(x, axis=-1, eps=1e-5):
    m = x.mean(dim=axis, keepdim=True)
    v = x.var(dim=axis, keepdim=True, unbiased=False)
    return (x - m) / torch.sqrt(v + eps)
def _scatter_add(tgt, idx, src, axis=0):
    return tgt.clone().index_add_(axis, idx, src)
def _segment_sum(src, seg, n):
    out = torch.zeros((n,) + src.shape[1:], dtype=src.dtype)
    return out.index_add_(0, seg, src)
def _pad(x, pw):
    flat = tuple(v for pair in reversed(pw) for v in pair)
    return torch.nn.functional.pad(x, flat)

kernel_name = 'interleave_layers__spectral_fnet__swiglu_ffn__prompt'

def setup_inputs():

    _w = (lambda a: (lambda t: t.to(torch.bfloat16) if t.is_floating_point() else t)(torch.as_tensor(a)))
    def _A_setup():
        B, S, D = 1, 2048, 576
        ns = torch.arange(S)[:, None] * torch.arange(S)[None, :]
        nd = torch.arange(D)[:, None] * torch.arange(D)[None, :]
        Ws_re = torch.cos(-2.0 * torch.pi * ns / S).to(float)
        Ws_im = torch.sin(-2.0 * torch.pi * ns / S).to(float)
        Wd_re = torch.cos(-2.0 * torch.pi * nd / D).to(float)
        Wd_im = torch.sin(-2.0 * torch.pi * nd / D).to(float)
        return {
            "x": _w((lambda *s: torch.randn(*s, dtype=torch.bfloat16) * 0.05)(B, S, D)),
            "dft_seq_re": _w(Ws_re),
            "dft_seq_im": _w(Ws_im),
            "dft_hid_re": _w(Wd_re),
            "dft_hid_im": _w(Wd_im),
        }
    _A_in = _A_setup()

    def _B_setup():
        B, S, D, F = 1, 2048, 576, 4608
        return {
            "x": _w((lambda *s: torch.randn(*s, dtype=torch.bfloat16) * 0.05)(B, S, D)),
            "w_gate": _w((lambda *s: torch.randn(*s, dtype=torch.bfloat16) * 0.2)(D, F)),
            "w_up": _w((lambda *s: torch.randn(*s, dtype=torch.bfloat16) * 0.2)(D, F)),
            "w_down": _w((lambda *s: torch.randn(*s, dtype=torch.bfloat16) * 0.2)(F, D)),
        }
    _B_in = _B_setup()

    return {
        "A_x": _A_in["x"],
        "A_dft_seq_re": _A_in["dft_seq_re"],
        "A_dft_seq_im": _A_in["dft_seq_im"],
        "A_dft_hid_re": _A_in["dft_hid_re"],
        "A_dft_hid_im": _A_in["dft_hid_im"],
        "B_x": _B_in["x"],
        "B_w_gate": _B_in["w_gate"],
        "B_w_up": _B_in["w_up"],
        "B_w_down": _B_in["w_down"],
    }

def reference(A_x, A_dft_seq_re, A_dft_seq_im, A_dft_hid_re, A_dft_hid_im, B_x, B_w_gate, B_w_up, B_w_down):
    def _A_ref(x, dft_seq_re, dft_seq_im, dft_hid_re, dft_hid_im):
        a = torch.einsum("bsd,ed->bse", x, dft_hid_re)
        b = torch.einsum("bsd,ed->bse", x, dft_hid_im)
        y = torch.einsum("ts,bse->bte", dft_seq_re, a) - torch.einsum("ts,bse->bte", dft_seq_im, b)
        return y

    def _B_ref(x, w_gate, w_up, w_down):
        g = _silu(x @ w_gate)
        u = x @ w_up
        return (g * u) @ w_down

    x = A_x
    x = x + _A_ref(_layernorm(x, axis=-1), A_dft_seq_re, A_dft_seq_im, A_dft_hid_re, A_dft_hid_im)
    x = x + _B_ref(_layernorm(x, axis=-1), B_w_gate, B_w_up, B_w_down)
    x = x + _A_ref(_layernorm(x, axis=-1), A_dft_seq_re, A_dft_seq_im, A_dft_hid_re, A_dft_hid_im)
    x = x + _B_ref(_layernorm(x, axis=-1), B_w_gate, B_w_up, B_w_down)
    return x
```

```python
class Asm:
    def __init__(self):
        self.lines = []
        self._uid = 0
    def __call__(self, s=""):
        for l in s.split("\n"):
            self.lines.append("    " + l.strip() if l.strip() and not l.strip().endswith(":") else l.strip())
        return self
    def raw(self, s):
        self.lines.append(s)
    def label(self, name):
        self.lines.append(name + ":")
    def uid(self, p="L"):
        self._uid += 1
        return f"{p}_{self._uid}"
    def text(self):
        return "\n".join(self.lines) + "\n"

def v(i, n=1):
    return f"v{i}" if n == 1 else f"v[{i}:{i+n-1}]"
def a(i, n=1):
    return f"a{i}" if n == 1 else f"a[{i}:{i+n-1}]"
def s(i, n=1):
    return f"s{i}" if n == 1 else f"s[{i}:{i+n-1}]"
def r(i, n=1):
    if i >= 256:
        return a(i - 256, n)
    assert i + n <= 256
    return v(i, n)

HEADER = '.amdgcn_target "amdgcn-amd-amdhsa--gfx950"\n.text\n'

def kernel_begin(A, name):
    A.raw(".text")
    A.raw(f".globl {name}")
    A.raw(".p2align 8")
    A.raw(f".type {name},@function")
    A.raw(f"{name}:")

def kernel_desc(A, name, vgpr=512, sgpr=102, accum=256, extra=()):
    A.raw('.section .rodata,"a"')
    A.raw(".p2align 6")
    A.raw(f".amdhsa_kernel {name}")
    A.raw(f"  .amdhsa_next_free_vgpr {vgpr}")
    A.raw(f"  .amdhsa_next_free_sgpr {sgpr}")
    A.raw(f"  .amdhsa_accum_offset {accum}")
    A.raw("  .amdhsa_group_segment_fixed_size 0")
    A.raw("  .amdhsa_kernarg_size 96")
    A.raw("  .amdhsa_user_sgpr_count 2")
    A.raw("  .amdhsa_user_sgpr_kernarg_segment_ptr 1")
    A.raw("  .amdhsa_system_sgpr_workgroup_id_x 1")
    for e in extra:
        A.raw("  " + e)
    A.raw(".end_amdhsa_kernel")
    A.raw(".text")

def srd(A, d, base, nbytes):
    A(f"s_mov_b32 s{d}, s{base}")
    A(f"s_and_b32 s{d+1}, s{base+1}, 0xffff")
    A(f"s_mov_b32 s{d+2}, {nbytes}")
    A(f"s_mov_b32 s{d+3}, 0x00020000")
```

```python
import re
REG = re.compile(r"^(-|\|)?(abs\()?([vas])(\d+|\[(\d+):(\d+)\])\)?\|?$")
def regs(tok):
    tok = tok.strip()
    if tok in ("vcc", "vcc_lo", "vcc_hi"): return {("s", 106), ("s", 107)}
    if tok in ("exec", "exec_lo", "exec_hi"): return {("s", 126), ("s", 127)}
    if tok == "m0": return {("s", 124)}
    m = REG.match(tok)
    if not m: return set()
    k = m.group(3)
    if m.group(5) is not None: return {(k, i) for i in range(int(m.group(5)), int(m.group(6)) + 1)}
    return {(k, int(m.group(4)))}
TRANS = ("v_exp_", "v_log_", "v_rcp_", "v_rsq_", "v_sqrt_", "v_sin_", "v_cos_")
class I: pass
def parse(line):
    t = line.split(";")[0].strip()
    if not t or t.endswith(":") or t.startswith("."): return None
    p = t.split(None, 1); op = p[0]
    rest = p[1] if len(p) > 1 else ""
    ops = [o.strip() for o in rest.split(",")] if rest else []
    mods = []
    if ops:
        last = ops[-1].split()
        ops[-1] = last[0] if last else ""; mods = last[1:]
    x = I(); x.op = op; x.ws = 1; x.d = set(); x.u = set(); x.mods = mods
    x.valu = op.startswith("v_") and not op.startswith("v_mfma"); x.mfma = op.startswith("v_mfma")
    x.vmem = op.startswith(("buffer_", "global_")); x.ds = op.startswith("ds_"); x.salu = op.startswith("s_")
    x.trans = op.startswith(TRANS); x.dot = op.startswith("v_dot")
    x.dpp = any(m.startswith(("row_", "quad_perm", "wave_")) for m in mods)
    x.ldsdma = x.vmem and "lds" in mods
    x.widestore = set(); x.a = x.b = x.c = set(); x.passes = 0
    R = [regs(o) for o in ops]
    if op == "s_nop": x.ws = int(ops[0], 0) + 1
    elif x.mfma:
        x.d = R[0]; x.a, x.b, x.c = R[1], R[2], R[3]; x.u = R[1] | R[2] | R[3]
        x.passes = 8 if "32x32" in op else 4
    elif x.valu:
        if op.startswith("v_cmpx"): x.d = R[0] | regs("exec"); x.u = set().union(*R[1:])
        elif op.startswith(("v_add_co", "v_sub_co", "v_addc_co", "v_subb_co", "v_div_scale", "v_mad_u64")): x.d = R[0] | R[1]; x.u = set().union(*R[2:])
        elif op.startswith(("v_permlane16_swap", "v_permlane32_swap", "v_swap")): x.d = R[0] | R[1]; x.u = R[0] | R[1]
        elif op == "v_nop": pass
        else:
            x.d = R[0]; x.u = set().union(*R[1:]) if len(R) > 1 else set()
            if op.startswith(("v_fmac", "v_dot2c", "v_writelane")) or x.dpp: x.u |= R[0]
    elif x.vmem:
        allr = set().union(*R) if R else set()
        if "_load" in op and not x.ldsdma:
            x.d = R[0]; x.u = set().union(*R[1:])
            if "d16" in op: x.u |= R[0]
        else:
            x.u = allr
            if "store" in op and ("x3" in op or "x4" in op): x.widestore = R[0] if op.startswith("buffer_") else R[1]
        if x.ldsdma: x.u |= regs("m0")
    elif x.ds:
        if op.startswith(("ds_read", "ds_bpermute", "ds_permute", "ds_swizzle")):
            x.d = R[0]; x.u = set().union(*R[1:])
            if "d16" in op: x.u |= R[0]
        else: x.u = set().union(*R)
    elif x.salu:
        if op.startswith(("s_cmp", "s_cbranch", "s_branch", "s_waitcnt", "s_barrier", "s_endpgm", "s_setprio", "s_sleep", "s_bitcmp")): x.u = set().union(*R) if R else set()
        else:
            x.d = R[0]; x.u = set().union(*R[1:]) if len(R) > 1 else set()
            if "saveexec" in op: x.d |= regs("exec")
    return x
def vec(s): return {r for r in s if r[0] in "va"}
def sca(s): return {r for r in s if r[0] == "s"}
def need(p, c):
    n = 0
    if p.valu:
        vd = vec(p.d); sd = sca(p.d)
        if vd:
            if c.mfma and vd & c.u: n = max(n, 3 if p.dot else 2)
            if c.valu and c.op.startswith(("v_readlane", "v_readfirstlane")) and vd & c.u: n = max(n, 1)
            if c.valu and (c.dpp or c.op.startswith("v_permlane")) and vd & c.u: n = max(n, 2)
            if p.trans and c.valu and vd & c.u: n = max(n, 1)
            if p.dot and (vd & (c.u | c.d)) and not (c.op == p.op): n = max(n, 3)
            if p.dot and c.op == p.op and vd & (c.u - c.d): n = max(n, 3)
            if ("sdwa" in p.op or any(m.startswith(("op_sel", "dst_sel")) for m in p.mods)) and c.valu and vd & (c.u | c.d): n = max(n, 1)
        if sd:
            if c.vmem and sd & c.u: n = max(n, 5)
            if c.valu and sd & c.u: n = max(n, 4 if c.op.startswith(("v_readlane", "v_writelane")) else 2)
            if c.salu and sd & c.u: n = max(n, 1)
            if ("s", 126) in sd and (c.mfma or (c.valu and c.op.startswith(("v_read", "v_write", "v_permlane")))): n = max(n, 4)
            if ("s", 126) in sd and c.dpp: n = max(n, 5)
    if p.salu and ("s", 124) in p.d and (c.ldsdma or "addtid" in c.op): n = max(n, 1)
    if p.widestore and (p.widestore & c.d): n = max(n, 2)
    if p.mfma:
        big = {4: 8, 8: 12}[p.passes]
        if c.mfma:
            if p.d & (c.a | c.b): n = max(n, big)
            if p.d & c.c and not (p.d == c.c and p.passes == c.passes): n = max(n, big - 2)
            if p.d & c.d and not (p.d & c.c) : n = max(n, 0)
        elif (c.valu or c.vmem or c.ds) and p.d & (c.u | c.d): n = max(n, big)
        if c.valu and p.c & c.d: n = max(n, {4: 3, 8: 7}[p.passes])
    return n
def pad(lines, report=None):
    out = []; hist = []
    total = 0
    for l in lines:
        x = parse(l)
        if x is None:
            out.append(l); continue
        dist = 0; add = 0
        for p in reversed(hist):
            if dist >= 12: break
            n = need(p, x)
            if n > dist: add = max(add, n - dist)
            dist += p.ws
        if add:
            out.append(f"    s_nop {add-1}"); hist.append(parse(out[-1])); total += add
            if report is not None: report.append((add, l.strip()))
        out.append(l); hist.append(x)
        if len(hist) > 16: hist.pop(0)
    return out, total
```

```python
from kb import *
LDS_A = 156672
SWS, SX, SW = 12, 16, 20
sC, sSL, sWV, sT2, sT1 = 24, 25, 26, 27, 28
XF, ACC, SUM, SQ, CS, MM, ONES = 64, 208, 240, 248, 48, 16, 12
WF = 256
VIMG = 147456

def rev_gather(A, vq, vm_, ssl, pitch, base_v, dst, tmp):
    t0, t1, t2_, sw = tmp, tmp + 1, tmp + 2, tmp + 3
    A(f"v_lshrrev_b32 v{sw}, 3, v{vm_}"); A(f"v_lshlrev_b32 v{sw}, 1, v{sw}")
    def addr(d, chunk):
        A(f"v_and_b32 v{t2_}, 3, v{chunk}"); A(f"v_xor_b32 v{t2_}, v{t2_}, v{sw}")
        A(f"v_lshrrev_b32 v{d}, 2, v{chunk}"); A(f"v_mul_u32_u24 v{d}, {pitch}, v{d}")
        A(f"v_lshl_add_u32 v{d}, v{t2_}, 4, v{d}"); A(f"v_add_u32 v{d}, v{d}, v{base_v}")
    A(f"s_lshl_b32 s40, s{ssl}, 2")
    A(f"v_add_u32 v{t0}, s40, v{vq}")
    addr(t1, t0)
    A.lg(f"ds_read_b128 {v(dst,4)}, v{t1}", "rg")
    A(f"v_sub_u32 v{t1}, 71, v{t0}")
    addr(t1, t1)
    A.lg(f"ds_read_b128 {v(dst+8,4)}, v{t1}", "rg")
    A(f"v_cmp_eq_u32 vcc, 0, v{t0}")
    A(f"v_sub_u32 v{t1}, 72, v{t0}")
    A(f"v_cndmask_b32 v{t1}, v{t1}, 36, vcc")
    addr(t1, t1)
    A.lg(f"ds_read_u16 v{dst+12}, v{t1}", "rg")
    A("s_mov_b32 s40, 0xffff")
    A.wait(lg="rg")
    for i in range(4):
        A(f"v_bfi_b32 v{dst+4+i}, s40, v{dst+12-i}, v{dst+11-i}")

def k_a(A, layer):
    nat = layer == 0
    A.reset()
    A("s_load_dwordx2 s[4:5], s[0:1], 88")
    if nat:
        A("s_load_dwordx2 s[6:7], s[0:1], 0"); A("s_load_dwordx4 s[8:11], s[0:1], 24")
    A("v_lshrrev_b32 v1, 6, v0"); A("v_and_b32 v0, 63, v0"); A(f"v_readfirstlane_b32 s{sWV}, v1")
    A("s_lshr_b32 s30, s2, 3"); A(f"s_and_b32 s{sC}, s2, 7")
    A("s_cmp_ge_u32 s30, 9"); A("s_cselect_b32 s31, 9, 0"); A("s_cselect_b32 s32, 8, 0")
    A(f"s_sub_u32 s{sSL}, s30, s31"); A(f"s_add_u32 s{sC}, s{sC}, s32")
    A("v_lshrrev_b32 v2, 4, v0"); A("v_and_b32 v3, 15, v0")
    A("v_lshlrev_b32 v4, 4, v0")
    wave_rows(A, sC, sWV, sT2, sT1, 30)
    A("s_waitcnt lgkmcnt(0)")
    srd(A, SWS, 4, WS_SIZE)
    A(f"s_lshl_b32 s33, s{sWV}, 10")
    if nat:
        srd(A, SX, 6, XBYTES)
        A(f"s_cmp_ge_u32 s{sWV}, 2"); A("s_cselect_b32 s8, s10, s8"); A("s_cselect_b32 s9, s11, s9")
        srd(A, SW, 8, 576 * 576 * 2)
        A("v_lshrrev_b32 v5, 2, v0"); A("v_lshrrev_b32 v6, 5, v0"); A("v_lshlrev_b32 v6, 1, v6")
        A("v_and_b32 v7, 3, v0"); A("v_xor_b32 v6, v6, v7"); A("v_lshlrev_b32 v6, 4, v6")
        A(f"v_add_u32 v7, s{sT1}, v5"); A("v_lshlrev_b32 v7, 6, v7"); A(f"v_add_u32 v7, s{sT2}, v7")
        A("v_sub_u32 v8, 0x800, v7"); A("v_cmp_eq_u32 vcc, 0, v7"); A("v_mov_b32 v9, 0x400"); A("v_cndmask_b32 v8, v8, v9, vcc")
        A("s_movk_i32 s34, 1152")
        A("v_mad_u32_u24 v7, v7, s34, v6"); A("v_mad_u32_u24 v8, v8, s34, v6")
        A("v_bfe_u32 v9, v5, 2, 1"); A("v_lshlrev_b32 v9, 4, v9"); A("v_lshrrev_b32 v10, 3, v5"); A("v_lshl_add_u32 v9, v10, 2, v9")
        A("v_and_b32 v10, 3, v5"); A("v_add_u32 v9, v9, v10")
        A(f"s_and_b32 s35, s{sWV}, 1"); A("s_lshl_b32 s35, s35, 3"); A(f"s_lshl_b32 s36, s{sSL}, 5"); A("s_add_u32 s35, s35, s36")
        A("v_add_u32 v9, s35, v9"); A("v_cmp_eq_u32 vcc, 0, v9"); A("v_mov_b32 v10, 0x120"); A("v_cndmask_b32 v9, v9, v10, vcc")
        A("v_mad_u32_u24 v9, v9, s34, v6")
        for ks in range(18):
            A(f"s_add_u32 m0, s33, {ks*4096 - ks*64}")
            A.vm(f"buffer_load_dwordx4 {v(XF+4*ks,4)}, v7, s[{SX}:{SX+3}], 0 offen offset:{ks*64}", ("x", 0, ks))
            A.vm(f"buffer_load_dwordx4 v9, s[{SW}:{SW+3}], 0 offen offset:{ks*64} lds", ("w", ks))
            A.vm(f"buffer_load_dwordx4 {v(XF+72+4*ks,4)}, v8, s[{SX}:{SX+3}], 0 offen offset:{ks*64}", ("x", 1, ks))
        A("v_lshrrev_b32 v5, 3, v3"); A("v_lshlrev_b32 v5, 1, v5"); A("v_xor_b32 v5, v5, v2"); A("v_lshl_add_u32 v5, v3, 2, v5"); A("v_lshlrev_b32 v5, 4, v5")
    else:
        A(f"s_lshl_b32 s34, s{sC}, 2"); A(f"s_add_u32 s34, s34, s{sWV}"); A(f"s_mul_i32 s34, s34, {36*KB}"); A(f"s_add_u32 s34, s34, {WS_XF2}")
        A(f"s_mul_i32 s35, s{sSL}, {72*KB}"); A("s_add_u32 s35, s35, s33"); A(f"s_add_u32 s35, s35, {WS_TAB}")
        A(f"s_lshl_b32 s36, s{sSL}, 8"); A(f"s_add_u32 s36, s36, {WS_CS}"); A("v_lshlrev_b32 v6, 2, v3")
        for ks in range(18):
            A(f"s_add_u32 m0, s33, {ks*4096}")
            A.vm(f"buffer_load_dwordx4 {v(XF+4*ks,4)}, v4, s[{SWS}:{SWS+3}], s34 offen offset:{(ks&1)*2048}", ("x", 0, ks))
            A.vm(f"buffer_load_dwordx4 v4, s[{SWS}:{SWS+3}], s35 offen lds", ("w", ks))
            A.vm(f"buffer_load_dwordx4 {v(XF+72+4*ks,4)}, v4, s[{SWS}:{SWS+3}], s34 offen offset:{(ks&1)*2048+1024}", ("x", 1, ks))
            A("s_add_u32 s35, s35, 4096")
            if ks & 1: A("s_add_u32 s34, s34, 4096")
        for t in range(4):
            A.vm(f"buffer_load_dword v{CS+4*t}, v6, s[{SWS}:{SWS+3}], s36 offen offset:{t*64}", "cs")
        A("v_mov_b32 v5, v4")
        l = A.uid("noclr")
        A("s_cmp_ge_u32 s2, 128"); A(f"s_cbranch_scc1 {l}"); A(f"s_cmp_lg_u32 s{sWV}, 0"); A(f"s_cbranch_scc1 {l}")
        A("s_lshl_b32 s37, s2, 8"); A(f"s_add_u32 s37, s37, {WS_FLAG}"); A("v_lshlrev_b32 v7, 2, v0"); A("v_mov_b32 v8, 0")
        A(f"buffer_store_dword v8, v7, s[{SWS}:{SWS+3}], s37 offen")
        A.label(l)
    A("v_add_u32 v11, 0x10000, v5")
    for i in range(4): A(f"v_mov_b32 v{ONES+i}, 0x3f803f80")
    T = ACC
    A(f"s_lshl_b32 s37, s{sWV}, 4"); A(f"v_add_u32 v{T}, s37, v3")
    A(f"v_lshlrev_b32 v{T+1}, 9, v2"); A(f"v_add_u32 v{T+1}, s{sC}, v{T+1}")
    A(f"v_add_u32 v{T+2}, 32, v{T+1}")
    l = A.uid("nsp")
    A(f"s_cmp_lg_u32 s{sC}, 0"); A(f"s_cbranch_scc1 {l}")
    A(f"v_add_u32 v{T+2}, 16, v{T+1}")
    A(f"v_and_b32 v{T+1}, 1, v2"); A(f"v_lshlrev_b32 v{T+1}, 9, v{T+1}"); A(f"v_lshrrev_b32 v{T+3}, 1, v2"); A(f"v_lshl_add_u32 v{T+1}, v{T+3}, 5, v{T+1}")
    A.label(l)
    A(f"v_lshlrev_b32 v{T+3}, 6, v{T}")
    M = lambda o, p, kk: MM + ((o * 2 + p) * 2 + kk) * 4
    for kk in range(2):
        A(f"v_mul_u32_u24 v{T+4}, v{T}, v{T+1+kk}")
        for j in range(8):
            A(f"v_and_b32 v{T+5}, 0x7ff, v{T+4}"); A(f"v_cvt_f32_u32 v{T+5}, v{T+5}"); A(f"v_mul_f32 v{T+5}, 0x3a000000, v{T+5}")
            A(f"v_cos_f32 v{T+8+(j&1)}, v{T+5}"); A(f"v_sin_f32 v{T+10+(j&1)}, v{T+5}")
            A(f"v_add_u32 v{T+4}, v{T+4}, v{T+3}")
            if j & 1:
                A(f"v_cvt_pk_bf16_f32 v{M(0,0,kk)+j//2}, v{T+8}, v{T+9}")
                A(f"v_cvt_pk_bf16_f32 v{M(0,1,kk)+j//2}, v{T+10}, v{T+11}")
                A(f"v_cvt_pk_bf16_f32 v{M(1,0,kk)+j//2}, -v{T+10}, -v{T+11}")
                A(f"v_mov_b32 v{M(1,1,kk)+j//2}, v{M(0,0,kk)+j//2}")
    l = A.uid("nsp")
    A(f"s_cmp_lg_u32 s{sC}, 0"); A(f"s_cbranch_scc1 {l}")
    for i in range(4):
        A(f"v_mov_b32 v{M(1,0,1)+i}, v{M(0,0,1)+i}"); A(f"v_mov_b32 v{M(1,1,1)+i}, v{M(0,1,1)+i}")
        for z in (M(0,0,1), M(0,1,1), M(1,0,0), M(1,1,0)): A(f"v_mov_b32 v{z+i}, 0")
    A(f"v_and_b32 v{T+5}, 1, v{T}"); A(f"v_lshlrev_b32 v{T+5}, 15, v{T+5}"); A(f"v_or_b32 v{T+5}, 0x3f80, v{T+5}")
    A(f"v_and_b32 v{T+6}, 0xffff0000, v{M(0,1,0)}"); A(f"v_or_b32 v{T+5}, v{T+5}, v{T+6}")
    A("v_cmp_eq_u32 vcc, 0, v2"); A(f"v_cndmask_b32 v{M(0,1,0)}, v{M(0,1,0)}, v{T+5}, vcc")
    A.label(l)
    A(f"s_and_b32 s38, s{sC}, 2"); A("v_xor_b32 v10, s38, v2"); A("v_lshlrev_b32 v10, 4, v10")
    A("s_movk_i32 s39, 18432"); A(f"v_mad_u32_u24 v10, v{T}, s39, v10")
    A(f"s_lshl_b32 s38, s{sSL}, 11"); A(f"s_lshl_b32 s39, s{sC}, 7"); A("s_add_u32 s38, s38, s39"); A(f"s_add_u32 s38, s38, {WS_Z}")
    if nat:
        A(f"s_mul_i32 s39, s{sWV}, {18*KB}"); A(f"s_add_u32 s39, s39, {72*KB}")
        A("v_add_u32 v6, s39, v4"); A("v_add_u32 v7, s39, v5"); A("v_lshl_add_u32 v8, v3, 6, s39")
        A(f"s_lshl_b32 s34, s{sC}, 2"); A(f"s_add_u32 s34, s34, s{sWV}"); A(f"s_mul_i32 s34, s34, {36*KB}")
        A(f"s_lshl_b32 s35, s{sSL}, 11"); A("s_add_u32 s34, s34, s35"); A(f"s_add_u32 s34, s34, {WS_XF0}")
        A(f"s_add_u32 s35, s34, {18*KB}")
        for rho in range(2):
            for ks in range(18):
                A.wait(vm=("x", rho, ks))
                A.lg(f"ds_write_b128 v6, {v(XF+72*rho+4*ks,4)} offset:{ks*1024}", "bw")
            for ks in range(18):
                A.lg(f"ds_read_b128 {v(XF+72*rho+4*ks,4)}, v7 offset:{ks*1024}", "br")
            rev_gather(A, 2, 3, sSL, 1024, 8, T, T + 16)
            A.vm(f"buffer_store_dwordx4 {v(T,4)}, v4, s[{SWS}:{SWS+3}], s34 offen offset:{rho*1024}")
            A.vm(f"buffer_store_dwordx4 {v(T+4,4)}, v4, s[{SWS}:{SWS+3}], s35 offen offset:{rho*1024}")
            A("s_nop 1")
        A.wait(vm=("w", 17)); A("s_barrier")
        l = A.uid("notab")
        A(f"s_cmp_ge_u32 s{sC}, 9"); A(f"s_cbranch_scc1 {l}")
        A("v_lshl_add_u32 v8, v3, 6, s33")
        rev_gather(A, 2, 3, sC, 4096, 8, T, T + 16)
        A(f"s_mul_i32 s34, s{sSL}, {72*KB}"); A(f"s_lshl_b32 s35, s{sC}, 12"); A("s_add_u32 s34, s34, s35"); A("s_add_u32 s34, s34, s33"); A(f"s_add_u32 s34, s34, {WS_TAB}")
        A(f"s_add_u32 s35, s34, {36*KB}")
        A(f"buffer_store_dwordx4 {v(T,4)}, v4, s[{SWS}:{SWS+3}], s34 offen")
        A(f"buffer_store_dwordx4 {v(T+4,4)}, v4, s[{SWS}:{SWS+3}], s35 offen")
        A("s_nop 1")
        A.label(l)
    def rdw(ks):
        if not nat and ks % 3 == 0:
            A.wait(vm=[("w", ks + 2), ("x", 1, ks + 2)]); A("s_barrier")
        for t in range(4):
            off = ks * 4096 + t * 1024
            A.lg(f"ds_read_b128 {r(WF + ((ks&1)*4+t)*4, 4)}, v{5 if off < 65536 else 11} offset:{off & 65535}", ("wf", ks, t))
    rdw(0)
    for ks in range(18):
        C = lambda x: None if ks == 0 else x
        for rho in range(2):
            x = XF + 72 * rho + 4 * ks
            A.mfma(SUM + 4 * rho, x, ONES, C(SUM + 4 * rho)); A.mfma(SQ + 4 * rho, x, x, C(SQ + 4 * rho))
        if ks < 17: rdw(ks + 1)
        for t in range(4):
            A.wait(lg=("wf", ks, t))
            wf = WF + ((ks & 1) * 4 + t) * 4
            for rho in range(2):
                A.mfma(ACC + 16 * rho + 4 * t, XF + 72 * rho + 4 * ks, wf, C(ACC + 16 * rho + 4 * t))
            if nat: A.mfma(CS + 4 * t, ONES, wf, C(CS + 4 * t))
    T = XF
    A("v_mul_u32_u24 v6, 80, v2")
    for rho in range(2):
        for i in range(4):
            A.lg(f"ds_bpermute_b32 v{T+4*rho+i}, v6, v{SQ+4*rho+i} offset:{4*i}", "bp")
    A("s_mov_b32 s34, 0x3ae38e39")
    A("v_mov_b32 v7, 0x3727c5ac")
    for k in range(8): A(f"v_mul_f32 v{SUM+k}, s34, v{SUM+k}")
    for k in range(8): A(f"v_fma_f32 v{T+8+k}, -v{SUM+k}, v{SUM+k}, v7")
    A.wait(lg="bp")
    for k in range(8): A(f"v_fma_f32 v{T+k}, v{T+k}, s34, v{T+8+k}")
    for k in range(8): A(f"v_max_f32 v{T+k}, v{T+k}, v7")
    for k in range(8): A(f"v_rsq_f32 v{T+k}, v{T+k}")
    for k in range(8): A(f"v_mul_f32 v{SUM+k}, v{SUM+k}, v{T+k}")
    for i in range(4):
        A(f"v_add_f32 v{T+8+i}, v{SUM+i}, v{SUM+4+i}"); A(f"v_sub_f32 v{T+12+i}, v{SUM+i}, v{SUM+4+i}")
    if not nat: A.wait(vm="cs")
    V = T + 16
    for t in range(4):
        sg = "" if t < 2 else "-"
        for i in range(4):
            A(f"v_mul_f32 v{V+4*t+i}, v{T+i}, v{ACC+4*t+i}")
            A(f"v_fma_f32 v{V+4*t+i}, {sg}v{T+4+i}, v{ACC+16+4*t+i}, v{V+4*t+i}")
            A(f"v_fma_f32 v{V+4*t+i}, -v{T+8+4*(t>>1)+i}, v{CS+4*t}, v{V+4*t+i}")
    l = A.uid("nps")
    A(f"s_add_u32 s35, s{sC}, s{sWV}"); A("s_cmp_lg_u32 s35, 0"); A(f"s_cbranch_scc1 {l}")
    A("v_cmp_eq_u32 vcc, 0, v2")
    for t in range(2):
        A(f"v_mul_f32 v8, v{T}, v{ACC+4*t}"); A(f"v_fma_f32 v8, -v{SUM}, v{CS+4*t}, v8")
        A(f"v_mul_f32 v9, v{T+4}, v{ACC+16+4*t}"); A(f"v_fma_f32 v9, -v{SUM+4}, v{CS+4*t}, v9")
        A(f"v_cndmask_b32 v{V+4*t}, v{V+4*t}, v8, vcc"); A(f"v_cndmask_b32 v{V+8+4*t}, v{V+8+4*t}, v9, vcc")
    if nat:
        A(f"v_mov_b32 v8, v{CS}")
        for t in range(1, 4):
            A(f"v_cmp_eq_u32 vcc, {t}, v2"); A(f"v_cndmask_b32 v8, v8, v{CS+4*t}, vcc")
        A(f"s_lshl_b32 s36, s{sSL}, 8"); A(f"s_add_u32 s36, s36, {WS_CS}"); A("v_lshlrev_b32 v9, 2, v0")
        A(f"buffer_store_dword v8, v9, s[{SWS}:{SWS+3}], s36 offen")
    A.label(l)
    A("v_mul_u32_u24 v6, 144, v3"); A(f"v_add_u32 v6, {VIMG}, v6")
    A(f"s_lshl_b32 s35, s{sWV}, 5"); A("v_lshl_add_u32 v7, v2, 3, v6"); A("v_add_u32 v7, s35, v7")
    A("v_lshl_add_u32 v6, v2, 4, v6")
    for t in range(4):
        A(f"v_cvt_pk_bf16_f32 v{V+4*t}, v{V+4*t}, v{V+4*t+1}"); A(f"v_cvt_pk_bf16_f32 v{V+4*t+1}, v{V+4*t+2}, v{V+4*t+3}")
        A.lg(f"ds_write_b64 v7, {v(V+4*t,2)} offset:{t*2304}", "vw")
    A.wait(lg="vw"); A("s_barrier")
    VF = T + 32
    for t in range(4):
        for kk in range(2):
            A.lg(f"ds_read_b128 {v(VF+(t*2+kk)*4,4)}, v6 offset:{t*2304+kk*64}", ("vf", t, kk))
    for p in range(2):
        for kk in range(2):
            for Tt in range(2):
                A.wait(lg=("vf", 2 * p + Tt, kk))
                for o in range(2):
                    d = ACC + (o * 2 + Tt) * 4
                    A.mfma(d, VF + ((2 * p + Tt) * 2 + kk) * 4, M(o, p, kk), None if p + kk == 0 else d)
    for o in range(2):
        for k in range(4):
            A(f"v_cvt_pk_bf16_f32 v{T+4*o+k}, v{ACC+8*o+2*k}, v{ACC+8*o+2*k+1}")
        A.vm(f"buffer_store_dwordx4 {v(T+4*o,4)}, v10, s[{SWS}:{SWS+3}], s38 offen offset:{o*64}")
    A("s_endpgm")

def prep(A):
    A.reset()
    A("s_load_dwordx2 s[4:5], s[0:1], 88"); A("s_load_dwordx4 s[8:11], s[0:1], 48"); A("s_load_dwordx2 s[6:7], s[0:1], 64")
    A("v_lshrrev_b32 v1, 6, v0"); A("v_and_b32 v0, 63, v0"); A(f"v_readfirstlane_b32 s{sWV}, v1")
    A("s_sub_u32 s24, s2, 144")
    A("v_lshrrev_b32 v2, 4, v0"); A("v_and_b32 v3, 15, v0"); A("v_lshlrev_b32 v4, 4, v0")
    A("v_bfe_u32 v5, v0, 2, 2"); A("v_and_b32 v6, 3, v0")
    A("s_waitcnt lgkmcnt(0)")
    srd(A, SWS, 4, WS_SIZE)
    srd(A, 16, 8, 576 * 4608 * 2); srd(A, 20, 10, 576 * 4608 * 2); srd(A, 28, 6, 576 * 4608 * 2)
    A(f"s_lshl_b32 s33, s{sWV}, 10")
    lw2, lmisc = A.uid("w2"), A.uid("misc")
    A("s_cmp_ge_u32 s24, 108"); A(f"s_cbranch_scc1 {lmisc}")
    A("s_cmp_ge_u32 s24, 72"); A(f"s_cbranch_scc1 {lw2}")
    A("v_lshrrev_b32 v7, 3, v0"); A("v_bfe_u32 v8, v0, 4, 1"); A(f"s_and_b32 s34, s{sWV}, 1"); A("s_lshl_b32 s34, s34, 1")
    A("v_or_b32 v8, s34, v8"); A("v_lshlrev_b32 v8, 1, v8"); A("v_and_b32 v9, 7, v0"); A("v_xor_b32 v8, v8, v9"); A("v_lshlrev_b32 v8, 4, v8")
    A("s_movk_i32 s35, 9216"); A("v_mad_u32_u24 v7, v7, s35, v8")
    A(f"s_mul_i32 s34, s{sWV}, {8*9216}"); A("s_lshl_b32 s35, s24, 7"); A("s_add_u32 s34, s34, s35")
    for gu in range(2):
        A("s_mov_b32 s35, s34")
        for i in range(18):
            A(f"s_add_u32 m0, s33, {gu*72*KB + i*4096}")
            A.vm(f"buffer_load_dwordx4 v7, s[{16+4*gu}:{19+4*gu}], s35 offen lds", ("w", gu))
            if i < 17: A(f"s_add_u32 s35, s35, {32*9216}")
    def traddr(d, row):
        A(f"v_bfe_u32 v20, v{row}, 1, 1"); A(f"v_bfe_u32 v21, v{row}, 3, 1"); A("v_lshl_or_b32 v20, v21, 1, v20")
        A(f"v_xor_b32 v20, s{sWV}, v20"); A("v_lshlrev_b32 v20, 5, v20"); A("v_lshl_add_u32 v20, v6, 3, v20")
        A(f"v_lshl_add_u32 v{d}, v{row}, 7, v20")
    A("v_lshl_add_u32 v16, v2, 3, v5")
    traddr(8, 16)
    A(f"v_sub_u32 v17, {864-32*17}, v16"); traddr(9, 17)
    A(f"v_sub_u32 v17, {864-32*17-4}, v16"); traddr(10, 17)
    A(f"v_sub_u32 v17, 576, v16"); A("v_cmp_eq_u32 vcc, 0, v16"); A("v_mov_b32 v18, 0x120"); A("v_cndmask_b32 v17, v17, v18, vcc"); traddr(11, 17)
    for i in range(4): A(f"v_mov_b32 v{ONES+i}, 0x3f803f80")
    A("s_lshl_b32 s34, s24, 2"); A(f"s_add_u32 s34, s34, s{sWV}"); A("s_mul_hi_u32 s35, s34, 0x0e38e38f")
    A("s_mul_i32 s36, s35, 18"); A("s_sub_u32 s34, s34, s36"); A(f"s_mul_i32 s35, s35, {WSTR}"); A(f"s_mul_i32 s34, s34, {36*KB}"); A("s_add_u32 s34, s34, s35")
    A("s_mov_b32 s36, 0xffff0000"); A("s_mov_b32 s37, 0x3ae38e39")
    A("s_mov_b32 s38, 0")
    A.wait(vm=("w", 0)); A("s_barrier")
    lp = A.uid("w1loop")
    A.label(lp)
    FR = 64
    for ks in range(18):
        for h in range(2):
            if ks < 9: ad, off = 8, (32 * ks + 4 * h) * 128
            elif ks == 9 and h == 0: ad, off = 11, 0
            else: ad, off = 9 + h, (17 - ks) * 4096
            A.lg(f"ds_read_b64_tr_b16 {v(FR+4*ks+2*h,2)}, v{ad} offset:{off}", ("f", ks))
        if ks >= 6:
            A.wait(lg=("f", ks - 6)); A.mfma(24, ONES, FR + 4 * (ks - 6), None if ks == 6 else 24)
    for ks in range(12, 18):
        A.wait(lg=("f", ks)); A.mfma(24, ONES, FR + 4 * ks, 24)
    for k in range(8, 12): A(f"v_add_u32 v{k}, {72*KB}, v{k}")
    A("v_mul_f32 v24, s37, v24")
    for ks in range(18):
        for i in range(4):
            x = FR + 4 * ks + i
            A(f"v_lshlrev_b32 v{28+2*i}, 16, v{x}"); A(f"v_and_b32 v{29+2*i}, s36, v{x}")
            A(f"v_sub_f32 v{28+2*i}, v{28+2*i}, v24"); A(f"v_sub_f32 v{29+2*i}, v{29+2*i}, v24")
            A(f"v_cvt_pk_bf16_f32 v{x}, v{28+2*i}, v{29+2*i}")
        A(f"buffer_store_dwordx4 {v(FR+4*ks,4)}, v4, s[{SWS}:{SWS+3}], s34 offen offset:{(ks&1)*1024} sc1")
        if ks & 1: A("s_add_u32 s34, s34, 2048")
    le = A.uid("w1end")
    A("s_cmp_lg_u32 s38, 0"); A(f"s_cbranch_scc1 {le}")
    A("s_mov_b32 s38, 1")
    A("s_waitcnt vmcnt(18)"); A("s_barrier")
    A(f"s_branch {lp}")
    A.label(le)
    A("s_endpgm")
    A.label(lw2); A.reset()
    A("s_sub_u32 s24, s24, 72")
    A("s_lshl_b32 s34, s24, 2"); A(f"s_add_u32 s34, s34, s{sWV}")
    A(f"s_mul_i32 s35, s34, {36*KB}"); A(f"s_mul_i32 s33, s{sWV}, {36*KB}")
    for i in range(36):
        if i % 4 == 0:
            A(f"s_add_u32 m0, s33, {i*KB}")
            if i: A("s_add_u32 s35, s35, 4096")
        A.vm(f"buffer_load_dwordx4 v4, s[28:31], s35 offen offset:{(i%4)*KB} lds", "w")
    A("s_mul_hi_u32 s36, s34, 0x1c71c71d"); A("s_mul_i32 s37, s36, 9"); A("s_sub_u32 s37, s34, s37")
    A("s_lshr_b32 s38, s36, 2"); A("s_and_b32 s36, s36, 3")
    A("s_mul_i32 s39, s37, 3"); A("s_add_u32 s39, s39, 8")
    A("s_add_u32 s41, s38, 1")
    A(f"s_mul_i32 s40, s38, {4*WSTR}"); A(f"s_add_u32 s40, s40, {648*KB}")
    A(f"s_mul_i32 s42, s{sWV}, 2304"); A(f"s_add_u32 s42, s42, {VIMG}")
    A("v_lshl_add_u32 v8, v0, 2, s42"); A("v_mov_b32 v7, v0"); A("s_mov_b32 s43, 0")
    A(f"s_mov_b32 s44, {WSTR}"); A("v_mov_b32 v23, s37")
    lp = A.uid("w2tab")
    A.label(lp)
    A("v_sub_u32 v16, 864, v7"); A("v_cmp_lt_u32 vcc, 0x120, v7"); A("v_cndmask_b32 v16, v7, v16, vcc")
    A("v_lshrrev_b32 v17, 5, v16"); A("v_bfe_u32 v18, v16, 2, 1")
    A("v_bfe_u32 v19, v16, 3, 2"); A("v_and_b32 v16, 3, v16"); A("v_lshl_add_u32 v16, v19, 2, v16")
    A("v_lshl_add_u32 v19, v17, 1, v18"); A("v_mul_u32_u24 v19, 57, v19"); A("v_lshrrev_b32 v19, 9, v19")
    A("v_mul_u32_u24 v20, 9, v19"); A("v_add_u32 v20, 1, v20"); A("v_lshrrev_b32 v20, 1, v20"); A("v_sub_u32 v20, v17, v20")
    A("v_cmp_lt_u32 vcc, 3, v20")
    A("v_subrev_u32 v20, s41, v20"); A("v_and_b32 v20, 3, v20"); A("v_lshl_add_u32 v20, v20, 1, v18"); A("v_add_u32 v20, 1, v20")
    A("v_cndmask_b32 v20, v20, 0, vcc")
    A("v_sub_u32 v21, s36, v19"); A("v_and_b32 v21, 3, v21"); A("v_cmp_eq_u32 vcc, 0, v21")
    A("v_add_u32 v21, s39, v21"); A("v_cndmask_b32 v21, v21, v23, vcc")
    A("v_mad_u32_u24 v20, v20, 36, v21"); A("v_lshlrev_b32 v20, 10, v20"); A("v_lshl_add_u32 v20, v16, 4, v20")
    A("v_mad_u32_u24 v20, v19, s44, v20")
    A("ds_write_b32 v8, v20")
    A("v_add_u32 v7, 64, v7"); A("v_add_u32 v8, 0x100, v8")
    A("s_add_u32 s43, s43, 1"); A("s_cmp_lt_u32 s43, 9"); A(f"s_cbranch_scc1 {lp}")
    A("v_lshl_add_u32 v8, v3, 2, s42")
    AD = 16
    for ct in range(36): A(f"ds_read_b32 v{AD+ct}, v8 offset:{ct*64}")
    A("v_lshl_add_u32 v9, v2, 2, v5"); A("v_mul_u32_u24 v9, 1152, v9"); A("v_lshl_add_u32 v9, v6, 3, v9"); A("v_add_u32 v9, s33, v9")
    A("v_lshlrev_b32 v10, 8, v2")
    A("s_waitcnt lgkmcnt(0)")
    for ct in range(36): A(f"v_add_u32 v{AD+ct}, v{AD+ct}, v10")
    A.wait(vm="w")
    for ct in range(36 + 6):
        if ct < 36:
            for h in range(2):
                A.lg(f"ds_read_b64_tr_b16 {v(64+4*ct+2*h,2)}, v9 offset:{h*16*1152+ct*32}", ("f", ct))
        if ct >= 6:
            A.wait(lg=("f", ct - 6))
            A(f"buffer_store_dwordx4 {v(64+4*(ct-6),4)}, v{AD+ct-6}, s[{SWS}:{SWS+3}], s40 offen")
    A("s_endpgm")
    A.label(lmisc)
    A("s_sub_u32 s24, s24, 108"); A("s_lshl_b32 s24, s24, 2"); A(f"s_add_u32 s24, s24, s{sWV}"); A("s_lshl_b32 s24, s24, 11"); A(f"s_add_u32 s24, s24, {WS_FLAG}")
    for i in range(4): A(f"v_mov_b32 v{8+i}, 0")
    for i in range(2): A(f"buffer_store_dwordx4 v[8:11], v4, s[{SWS}:{SWS+3}], s24 offen offset:{i*1024}")
    A("s_endpgm")

def kernel_a0(A, name):
    kernel_begin(A, name)
    lp, le = A.uid("prep"), A.uid("exit")
    A("s_cmp_ge_u32 s2, 144"); A(f"s_cbranch_scc1 {lp}")
    k_a(A, 0)
    A.label(lp)
    A("s_cmp_ge_u32 s2, 256"); A(f"s_cbranch_scc1 {le}")
    prep(A)
    A.label(le); A("s_endpgm")
    kernel_desc(A, name, vgpr=288)
def kernel_a1(A, name):
    kernel_begin(A, name)
    le = A.uid("exit")
    A("s_cmp_ge_u32 s2, 144"); A(f"s_cbranch_scc1 {le}")
    k_a(A, 1)
    A.label(le); A("s_endpgm")
    kernel_desc(A, name, vgpr=288)
```

```python
from kb import *
LDS_B = 159744
STG = 12 * KB; NSLOT = 12; NSTG = 81
ZIMG = 72 * KB; PARK = 144 * KB
SWS, SOUT = 12, 16
sLAY, sC, sQ, sJ, sWV, sT2, sT1 = 3, 20, 21, 22, 23, 24, 25
sW, sM0, sH, sFH, sFP, sKS, sP, sPIN, sPS, sSPIN = 26, 27, 28, 32, 33, 34, 35, 38, 39, 40
WF, GU, TMP, SEL, HS, X = 16, 52, 84, 96, 104, 112
SELB, SELA = SEL, SEL + 2
vCN, vR2, vFL, vFA = 7, 9, 11, 102
DEPTH = 6
def xr(rho, ks): return X + (ks * 2 + rho) * 4
def hr(p, rel, rho):
    if p < 8: return 256 + ((p * 4 + rel) * 2 + rho) * 4
    return HS + 4 * rho if rel == 0 else X + ((rel - 1) * 2 + rho) * 4
def kidx(u): return (0, u) if u < 9 else (1 + (u - 9) % 3, (u - 9) // 3)
W4 = f"s[{SWS}:{SWS+3}]"

class Stream:
    def __init__(self, A): self.A = A; self.mf = []; self.fill = []
    def n(self): return len(self.mf)
    def add(self, fn): self.mf.append(fn)
    def at(self, pos, fn): self.fill.append((pos, len(self.fill), fn))
    def spread(self, start, span, fns):
        for i, f in enumerate(fns):
            if f: self.at(start + (i * span) // len(fns), f)
    def emit(self):
        self.fill.sort(key=lambda x: x[:2]); j = 0
        while j < len(self.fill) and self.fill[j][0] < 0: self.fill[j][2](); j += 1
        for i, m in enumerate(self.mf):
            m()
            while j < len(self.fill) and self.fill[j][0] <= i: self.fill[j][2](); j += 1
        while j < len(self.fill): self.fill[j][2](); j += 1

def dma_stage_fns(A, g):
    fns = []
    def first():
        A(f"s_add_u32 m0, s{sM0}, {(g % NSLOT) * STG}")
    fns.append(first)
    for k in range(3):
        def f(k=k):
            A.vm(f"buffer_load_dwordx4 v4, {W4}, s{sW} offen offset:{k*KB} lds", ("W", g))
            if k == 2: A(f"s_add_u32 s{sW}, s{sW}, {STG}")
        fns.append(f)
    return fns

def poll(A, sflag, voff, val):
    lp, ok = A.uid("poll"), A.uid("ok")
    A(f"s_mov_b32 s{sSPIN}, 0")
    A.label(lp)
    A(f"buffer_load_dword v{vFL}, v{voff}, {W4}, s{sflag} offen sc1")
    A.waitall(lg=False)
    A(f"v_cmp_gt_u32 vcc, {val}, v{vFL}")
    A(f"s_add_u32 s{sSPIN}, s{sSPIN}, 1")
    A(f"s_cbranch_vccz {ok}")
    A(f"s_cmp_lt_u32 s{sSPIN}, 0x20000"); A(f"s_cbranch_scc1 {lp}")
    A.label(ok)
def signal(A, sflag, sidx, val):
    A(f"s_lshl_b32 s41, s{sidx}, 2"); A(f"s_add_u32 s41, s41, s{sflag}")
    A(f"v_mov_b32 v{vFL}, {val}")
    A("s_mov_b64 exec, 1")
    A.vm(f"buffer_store_dword v{vFL}, off, {W4}, s41 sc1")
    A("s_mov_b64 exec, -1")

def body(A):
    A.reset()
    A("s_load_dwordx2 s[4:5], s[0:1], 88"); A("s_load_dwordx2 s[6:7], s[0:1], 72")
    A("v_lshrrev_b32 v1, 6, v0"); A("v_and_b32 v0, 63, v0"); A(f"v_readfirstlane_b32 s{sWV}, v1")
    A(f"s_bfe_u32 s{sQ}, s2, 0x20001"); A(f"s_bfe_u32 s{sJ}, s2, 0x20003")
    A(f"s_lshr_b32 s{sC}, s2, 5"); A(f"s_lshl_b32 s{sC}, s{sC}, 1"); A("s_and_b32 s41, s2, 1"); A(f"s_add_u32 s{sC}, s{sC}, s41")
    A("v_lshlrev_b32 v4, 4, v0"); A("v_lshrrev_b32 v2, 4, v0"); A("v_and_b32 v3, 15, v0")
    wave_rows(A, sC, sWV, sT2, sT1, 41)
    A(f"s_sub_u32 s42, 64, s{sT2}"); A(f"s_bitcmp1_b32 s{sWV}, 0"); A(f"s_cselect_b32 s42, s42, s{sT2}")
    A(f"s_and_b32 s44, s{sWV}, 2"); A("s_add_u32 s45, s44, 1")
    l = A.uid("img")
    A(f"s_add_u32 s43, s{sC}, s44"); A("s_cmp_lg_u32 s43, 0"); A(f"s_cbranch_scc1 {l}")
    A(f"s_mov_b32 s44, s{sWV}"); A(f"s_mov_b32 s45, s{sWV}")
    A.label(l)
    A("s_mul_i32 s42, s42, 18432"); A(f"s_add_u32 s42, s42, {WS_Z}")
    A(f"s_mul_i32 s43, s{sWV}, 18432"); A(f"s_add_u32 s43, s43, {ZIMG}")
    A(f"s_lshl_b32 s46, s{sC}, 2"); A(f"s_add_u32 s46, s46, s{sWV}"); A(f"s_mul_i32 s46, s46, {36*KB}")
    A(f"s_mul_i32 s47, s{sLAY}, {WS_XF2-WS_XF0}"); A("s_add_u32 s47, s47, s46"); A(f"s_add_u32 s47, s47, {WS_XF0}")
    A(f"s_add_u32 s48, s47, {18*KB}")
    A("s_waitcnt lgkmcnt(0)")
    srd(A, SWS, 4, WS_SIZE); srd(A, SOUT, 6, XBYTES)
    XP = lambda rho, ks: 256 + (ks * 2 + rho) * 4
    for sl in range(9):
        if sl % 2 == 0: A(f"s_add_u32 m0, s43, {sl*2048}")
        o = (sl & 1) * 2048
        A.vm(f"buffer_load_dwordx4 {r(XP(0,sl),4)}, v4, {W4}, s47 offen offset:{o}", ("x", sl))
        for k in range(2): A.vm(f"buffer_load_dwordx4 v4, {W4}, s42 offen offset:{o+k*KB} lds", ("z", sl))
        A.vm(f"buffer_load_dwordx4 {r(XP(1,9+sl),4)}, v4, {W4}, s48 offen offset:{o+KB}", ("x", sl))
        A.vm(f"buffer_load_dwordx4 {r(XP(0,9+sl),4)}, v4, {W4}, s48 offen offset:{o}", ("x", sl))
        A.vm(f"buffer_load_dwordx4 {r(XP(1,sl),4)}, v4, {W4}, s47 offen offset:{o+KB}", ("x", sl))
        if sl & 1:
            for sr in (42, 47, 48): A(f"s_add_u32 s{sr}, s{sr}, 4096")
    A(f"s_lshl_b32 s41, s{sQ}, 2"); A(f"s_add_u32 s41, s41, s{sJ}"); A(f"s_mul_i32 s{sW}, s41, {WSTR}")
    A(f"s_mul_i32 s{sM0}, s{sWV}, {3*KB}"); A(f"s_add_u32 s{sW}, s{sW}, s{sM0}")
    A(f"s_lshl_b32 s41, s{sC}, 2"); A(f"s_add_u32 s42, s41, s{sQ}"); A("s_lshl_b32 s42, s42, 2"); A(f"s_add_u32 s42, s42, s{sWV}")
    A(f"s_lshl_b32 s{sFH}, s42, 6"); A(f"s_add_u32 s{sFH}, s{sFH}, {WS_FLAG}")
    for rel in range(4):
        A(f"s_add_u32 s43, s{sJ}, {rel}"); A("s_and_b32 s43, s43, 3"); A("s_lshl_b32 s47, s42, 2"); A("s_add_u32 s43, s43, s47")
        A(f"s_mul_i32 s43, s43, {18*KB}"); A(f"s_add_u32 s{sH+rel}, s43, {WS_H}")
    A(f"s_add_u32 s41, s41, s{sJ}"); A("s_lshl_b32 s41, s41, 2")
    A(f"s_add_u32 s42, s41, s{sWV}"); A(f"s_lshl_b32 s{sFP}, s42, 6"); A(f"s_add_u32 s{sFP}, s{sFP}, {WS_FLAG + 16*KB}")
    A(f"s_lshl_b32 s{sPS}, s42, 12"); A(f"s_add_u32 s{sPS}, s{sPS}, {WS_PS}")
    for i in range(4):
        A(f"s_add_u32 s43, s{sQ}, {i+1}"); A("s_and_b32 s43, s43, 3"); A("s_add_u32 s43, s43, s41"); A("s_lshl_b32 s43, s43, 2"); A(f"s_add_u32 s43, s43, s{sWV}")
        A(f"s_mul_i32 s43, s43, {6*KB}"); A(f"s_add_u32 s{sP+i}, s43, {WS_P + (2*KB*i if i < 3 else 0)}")
    A(f"s_mul_i32 s{sKS}, s{sJ}, 9"); A(f"s_add_u32 s{sKS}, s{sKS}, 1"); A(f"s_lshr_b32 s{sKS}, s{sKS}, 1"); A(f"s_add_u32 s{sKS}, s{sKS}, s{sQ}")
    A("v_add_u32 v5, 0x10000, v4"); A("v_add_u32 v6, 0x20000, v4")
    A("v_min_u32 v1, 2, v0"); A("v_add_u32 v1, 1, v1")
    for k, sr in enumerate((sJ, sQ)):
        A(f"v_add_u32 v{vFA+k}, s{sr}, v1"); A(f"v_and_b32 v{vFA+k}, 3, v{vFA+k}"); A(f"v_lshlrev_b32 v{vFA+k}, 2, v{vFA+k}")
    T = GU
    A(f"v_lshrrev_b32 v{T}, 2, v0"); A(f"v_lshlrev_b32 v{T}, 6, v{T}"); A(f"v_and_b32 v{T+1}, 3, v0"); A(f"v_lshl_add_u32 v{T}, v{T+1}, 3, v{T}")
    A(f"v_and_b32 v{T+1}, 1, v2"); A(f"v_lshl_add_u32 v{T}, v{T+1}, 5, v{T}")
    for k in range(2):
        A(f"s_mul_i32 s41, s{44+k}, 18432"); A(f"s_add_u32 s41, s41, {ZIMG}")
        A(f"v_add_u32 v{12+2*k}, s41, v{T}"); A(f"v_xor_b32 v{13+2*k}, 32, v{12+2*k}")
    ONES = 108
    for i in (0, 1, 4, 5): A(f"v_mov_b32 v{SEL+i}, 0")
    for i in range(4): A(f"v_mov_b32 v{ONES+i}, 0x3f803f80")
    A(f"v_and_b32 v{T}, 1, v3"); A(f"v_lshlrev_b32 v{T}, 4, v{T}"); A(f"v_mov_b32 v{T+1}, 0x3f80"); A(f"v_lshlrev_b32 v{T}, v{T}, v{T+1}")
    A(f"v_lshrrev_b32 v{T+1}, 1, v3"); A(f"v_lshlrev_b32 v{T+2}, 1, v2"); A(f"v_sub_u32 v{T+1}, v{T+1}, v{T+2}")
    for k in range(2):
        A(f"v_cmp_eq_u32 vcc, {k}, v{T+1}"); A(f"v_cndmask_b32 v{SEL+2+k}, 0, v{T}, vcc")
    B = {(0, 0): 84, (0, 1): 88, (1, 0): 92, (1, 1): 104}
    A(f"v_add_u32 v{T}, s{sT1}, v3")
    A(f"v_lshlrev_b32 v{T+1}, 6, v{T}"); A(f"v_add_u32 v{T+1}, s{sT2}, v{T+1}")
    A(f"v_cmp_eq_u32 s[42:43], 0, v{T+1}")
    A(f"v_sub_u32 v{T+1}, 0x800, v{T+1}"); A(f"v_lshrrev_b32 v{T+1}, 6, v{T+1}"); A(f"v_cndmask_b32 v{T+1}, v{T+1}, 16, s[42:43]")
    A("v_cmp_eq_u32 vcc, 0, v2")
    for z, dst in ((0, B[0, 0]), (1, B[1, 0])):
        for k in range(4):
            A(f"v_lshl_add_u32 v{T+2}, v2, 1, {8*(k>>1) + (k&1)}"); A(f"v_mul_u32_u24 v{T+2}, v{T+2}, v{T+z}"); A(f"v_and_b32 v{T+2}, 31, v{T+2}")
            A(f"v_cvt_f32_u32 v{T+2}, v{T+2}"); A(f"v_mul_f32 v{T+2}, 0x3d000000, v{T+2}")
            A(f"v_cos_f32 v{T+3}, v{T+2}"); A(f"v_sin_f32 v{T+4}, v{T+2}")
            if k == 0:
                A(f"v_lshlrev_b32 v{T+5}, 31, v{T+z}"); A(f"v_or_b32 v{T+5}, 1.0, v{T+5}"); A(f"v_cndmask_b32 v{T+4}, v{T+4}, v{T+5}, vcc")
            A(f"v_cvt_pk_bf16_f32 v{dst+k}, v{T+3}, v{T+4}")
    for k in range(4):
        A(f"v_cndmask_b32 v{B[0,1]+k}, v{B[1,0]+k}, v{B[0,0]+k}, s[42:43]"); A(f"v_cndmask_b32 v{B[1,1]+k}, v{B[0,0]+k}, v{B[1,0]+k}, s[42:43]")
    A("v_cmp_eq_u32 s[44:45], 0, v3")
    A(f"s_add_u32 s41, s{sM0}, {PARK}"); A("v_add_u32 v1, s41, v4")
    SUM, SQ = 256 + 160, 256 + 168
    S = Stream(A)
    def zread(hs):
        sl, im = divmod(hs, 2); fns = []
        for ab in range(2):
            for h in range(2):
                def f(ab=ab, h=h):
                    if im == 0 and ab == 0 and h == 0 and sl % 3 == 0:
                        A.wait(vm=[("z", sl + 2), ("x", sl + 2)]); A("s_barrier")
                    A.lg(f"ds_read_b64_tr_b16 {v(WF+((hs%3)*2+ab)*4+2*h,2)}, v{12+2*im+ab} offset:{sl*2048+h*KB}", ("zf", hs))
                fns.append(f)
        return fns
    def outs(hs):
        sl, im = divmod(hs, 2)
        return [(1, 1, 9 + sl), (0, 0, sl)] if im == 0 else [(0, 1, 9 + sl), (1, 0, sl)]
    seen = set()
    def stats(hs):
        for rho, half, ks in outs(hs):
            first = rho not in seen; seen.add(rho)
            S.add(lambda rho=rho, ks=ks, first=first: A.mfma(SUM + 4 * rho, ONES, xr(rho, ks), None if first else SUM + 4 * rho))
            S.add(lambda rho=rho, ks=ks, first=first: A.mfma(SQ + 4 * rho, xr(rho, ks), xr(rho, ks), None if first else SQ + 4 * rho))
    def cvts(hs):
        fns = []
        for o, (rho, half, ks) in enumerate(outs(hs)):
            for k in range(4):
                acc = GU + (hs & 1) * 16 + o * 8 + 2 * k
                fns.append(lambda rho=rho, ks=ks, k=k, acc=acc: A(f"v_cvt_pk_bf16_f32 v{xr(rho,ks)+k}, v{acc}, v{acc+1}"))
        return fns
    for f in zread(0) + zread(1): S.at(-1, f)
    wq = [f for g in range(DEPTH) for f in dma_stage_fns(A, g)]
    for hs in range(18):
        p0 = S.n()
        for o, (rho, half, ks) in enumerate(outs(hs)):
            for ab in range(2):
                acc = GU + (hs & 1) * 16 + o * 8 + ab * 4
                S.add(lambda acc=acc, ab=ab, rho=rho, ks=ks: A.mfma(acc, SELB if ab else SELA, XP(rho, ks), None))
        for o, (rho, half, ks) in enumerate(outs(hs)):
            for ab in range(2):
                acc = GU + (hs & 1) * 16 + o * 8 + ab * 4; zf = WF + ((hs % 3) * 2 + ab) * 4
                def f(acc=acc, ab=ab, rho=rho, half=half, zf=zf, o=o, hs=hs):
                    A.wait(lg=("zf", hs))
                    if hs < 2 and o == 1 and ab == 0:
                        for k in range(4): A(f"v_cndmask_b32 v{zf+k}, v{zf+k}, 0, s[44:45]")
                    A.mfma(acc, zf, B[rho, half], acc)
                S.add(f)
        if hs >= 1:
            S.spread(p0, 8, cvts(hs - 1)); stats(hs - 1)
        if hs + 2 < 18: S.spread(p0 + 8, 4, zread(hs + 2))
        if hs >= 6:
            for k in range(2):
                if wq: S.at(p0 + 3 + 6 * k, wq.pop(0))
    for f in cvts(17) + wq: S.at(S.n() - 1, f)
    stats(17)
    S.emit()
    for ks in range(18):
        if ks in (4, 13): continue
        l = A.uid("pk")
        A(f"s_cmp_lg_u32 s{sKS}, {ks}"); A(f"s_cbranch_scc1 {l}")
        for rho in range(2): A(f"ds_write_b128 v1, {v(xr(rho,ks),4)} offset:{rho*KB}")
        A.label(l)
    for j in range(4):
        l = A.uid("pk")
        A(f"s_cmp_lg_u32 s{sJ}, {j}"); A(f"s_cbranch_scc1 {l}")
        for rho in range(2): A(f"ds_write_b64 v1, {v(xr(rho, 4 if j < 2 else 13) + 2*(j&1),2)} offset:{2*KB+rho*8}")
        A.label(l)
    T = TMP
    A(f"v_and_b32 v{T+10}, 3, v3"); A(f"v_lshrrev_b32 v{T+11}, 2, v3"); A(f"v_lshl_add_u32 v{T+11}, v{T+11}, 4, v3"); A(f"v_lshlrev_b32 v{T+11}, 2, v{T+11}")
    for k in range(8): A(f"v_accvgpr_read_b32 v{T+k}, {r(SQ+k)}")
    for k in range(1, 4):
        A(f"v_cmp_eq_u32 vcc, {k}, v{T+10}")
        for rho in range(2): A(f"v_cndmask_b32 v{T+4*rho}, v{T+4*rho}, v{T+4*rho+k}, vcc")
    for rho in range(2): A.lg(f"ds_bpermute_b32 v{T+4*rho}, v{T+11}, v{T+4*rho}", "bp")
    A("s_mov_b32 s41, 0x3ae38e39"); A(f"v_mov_b32 v{T+8}, 0x3727c5ac")
    for rho in range(2):
        A(f"v_accvgpr_read_b32 v{T+4*rho+1}, {r(SUM+4*rho)}"); A(f"v_mul_f32 v{T+4*rho+1}, s41, v{T+4*rho+1}")
        A(f"v_fma_f32 v{T+4*rho+1}, -v{T+4*rho+1}, v{T+4*rho+1}, v{T+8}")
    A.wait(lg="bp")
    for rho in range(2):
        A(f"v_fma_f32 v{T+4*rho}, v{T+4*rho}, s41, v{T+4*rho+1}"); A(f"v_max_f32 v{T+4*rho}, v{T+4*rho}, v{T+8}")
        A(f"v_rsq_f32 v{vCN+rho}, v{T+4*rho}"); A(f"v_rcp_f32 v{vR2+rho}, v{T+4*rho}")
    for rho in range(2): A(f"v_mul_f32 v{vCN+rho}, 0xbfb8aa3b, v{vCN+rho}")
    def gemm(S, g0, g1, mm, lead):
        def rd(fr):
            def f():
                off = (fr % (NSLOT * 12)) * KB
                if fr % 12 == 0:
                    A.wait(vm=("W", fr // 12)); A("s_barrier")
                A.lg(f"ds_read_b128 {v(WF+4*(fr%9),4)}, v{4+off//65536} offset:{off%65536}", ("wf", fr // 3))
            return f
        def reads(gr, pos, step):
            for c in range(3):
                fr = gr * 3 + c
                S.at(pos + c * step, rd(fr))
                if fr % 12 == 0 and fr // 12 + DEPTH < NSTG:
                    fns = dma_stage_fns(A, fr // 12 + DEPTH)
                    S.at(pos, fns[0])
                    for k in range(3): S.at(max(pos, 0) + 1 + (8 if pos >= 0 else 4) * k, fns[1 + k])
        if lead:
            reads(g0, -1, 0); reads(g0 + 1, -1, 0)
        for gr in range(g0, g1):
            p0 = S.n()
            for rho in range(2):
                for c in range(3):
                    def f(rho=rho, c=c, gr=gr):
                        A.wait(lg=("wf", gr))
                        acc, b, first = mm(gr, c, rho)
                        A.mfma(acc, WF + 4 * ((gr * 3 + c) % 9), b, None if first else acc)
                    S.add(f)
            if gr + 2 < NSTG * 4: reads(gr + 2, p0, 2)
    def mm1(gr, c, rho):
        blk, fi = divmod(gr * 3 + c, 36); gu, ks = divmod(fi, 18)
        return GU + (blk & 1) * 16 + gu * 8 + rho * 4, xr(rho, ks), ks == 0
    def silu(blk):
        fns = []; p, ab = divmod(blk, 2)
        E = lambda s: fns.append(lambda: A(s))
        for rho in range(2):
            for i0 in (0, 2):
                g = GU + (blk & 1) * 16 + rho * 4 + i0; u = g + 8; t = TMP + 2 * i0
                for i in range(2): E(f"v_mul_f32 v{t+i}, v{vCN+rho}, v{g+i}")
                for i in range(2): E(f"v_exp_f32 v{t+i}, v{t+i}")
                for i in range(2): E(f"v_mul_f32 v{t+2+i}, v{g+i}, v{u+i}")
                for i in range(2): E(f"v_add_f32 v{t+i}, 1.0, v{t+i}")
                for i in range(2): E(f"v_rcp_f32 v{t+i}, v{t+i}")
                fns.append(None)
                for i in range(2): E(f"v_mul_f32 v{t+2+i}, v{t+i}, v{t+2+i}")
                d = hr(p, 0, rho) + 2 * ab + i0 // 2
                if d < 256: E(f"v_cvt_pk_bf16_f32 v{d}, v{t+2}, v{t+3}")
                else:
                    E(f"v_cvt_pk_bf16_f32 v{t}, v{t+2}, v{t+3}"); E(f"v_accvgpr_write_b32 {r(d)}, v{t}")
            if ab:
                def st(rho=rho):
                    A.vm(f"buffer_store_dwordx4 {r(hr(p,0,rho),4)}, v4, {W4}, s{sH} offen offset:{((p&1)*2+rho)*KB} sc1", ("hs", p))
                    if p & 1 and rho: A(f"s_add_u32 s{sH}, s{sH}, 4096")
                fns.append(st)
        return fns
    S = Stream(A)
    gemm(S, 0, 216, mm1, True)
    for blk in range(17): S.spread((blk + 1) * 72 + 4, 66, silu(blk))
    S.emit()
    A("s_nop 7")
    for f in silu(17):
        if f: f()
    A.wait(vm=("hs", 8))
    signal(A, sFH, sJ, 1)
    poll(A, sFH, vFA, 1)
    for p in range(9):
        for rel in range(1, 4):
            for rho in range(2):
                A.vm(f"buffer_load_dwordx4 {r(hr(p,rel,rho),4)}, v4, {W4}, s{sH+rel} offen offset:{((p&1)*2+rho)*KB} sc1", ("hl", p))
            if p & 1: A(f"s_add_u32 s{sH+rel}, s{sH+rel}, 4096")
    ACC2 = X + 24; PST = X + 64
    def mm2(gr, c, rho):
        pos, u = divmod((gr - 216) * 3 + c, 36); rel, p = kidx(u)
        if rel: A.wait(vm=("hl", p))
        return ACC2 + (pos % 3) * 8 + rho * 4, hr(p, rel, rho), u == 0
    def epi(pos):
        fns = []
        E = lambda s: fns.append(lambda: A(s))
        i, ab = divmod(pos - 1, 2)
        for rho in range(2):
            acc = ACC2 + (pos % 3) * 8 + rho * 4
            for k in range(4): E(f"v_mul_f32 v{acc+k}, v{vR2+rho}, v{acc+k}")
            if pos >= 7: continue
            d = PST + 16 + 2 * rho if pos == 0 else PST + (i & 1) * 8 + rho * 4 + 2 * ab
            for k in range(2): E(f"v_cvt_pk_bf16_f32 v{d+k}, v{acc+2*k}, v{acc+2*k+1}")
            if pos and ab:
                fns.append(lambda rho=rho, d=d: A.vm(f"buffer_store_dwordx4 {v(d-2,4)}, v4, {W4}, s{sP+i} offen offset:{rho*KB} sc1", "ps"))
        if pos == 0:
            def st():
                A(f"s_lshl_b32 s41, s{sQ}, 10"); A(f"s_add_u32 s41, s41, s{sPS}")
                A.vm(f"buffer_store_dwordx4 {v(PST+16,4)}, v4, {W4}, s41 offen sc1", "ps")
            fns.append(st)
        return fns
    S = Stream(A)
    gemm(S, 216, 324, mm2, False)
    for pos in range(8): S.spread((pos + 1) * 72 + 4, 30, epi(pos))
    def sig():
        A.wait(vm="ps"); signal(A, sFP, sQ, 1)
    S.at(8 * 72 + 36, sig)
    S.emit()
    IN = PST + 24
    for rho in range(2): A.lg(f"ds_read_b128 {v(IN+24+4*rho,4)}, v1 offset:{rho*KB}", "res")
    for f in epi(8): f()
    poll(A, sFP, vFA + 1, 1)
    A(f"s_add_u32 s41, s{sPIN}, 4096")
    for i in range(3):
        for rho in range(2):
            k = i * 2 + rho
            A.vm(f"buffer_load_dwordx4 {v(IN+4*k,4)}, v4, {W4}, s{sPIN if k < 4 else 41} offen offset:{(k%4)*KB} sc1", ("pl", k))
    single = A.uid("nosingle")
    SI = WF
    A(f"s_cmp_lg_u32 s{sQ}, s{sWV}"); A(f"s_cbranch_scc1 {single}")
    for i in range(4): A(f"buffer_load_dwordx4 {v(SI+4*i,4)}, v4, {W4}, s{sPS} offen offset:{i*KB} sc1")
    A(f"ds_read_b128 {v(SI+16,4)}, v1 offset:{2*KB}")
    A.label(single)
    acc = lambda ab, rho: ACC2 + ((7 + ab) % 3) * 8 + rho * 4
    A.wait(lg="res")
    for src in (3, 0, 1, 2):
        for rho in range(2):
            if src < 3: A.wait(vm=("pl", src * 2 + rho))
            for ab in range(2): A.mfma(acc(ab, rho), SELB if ab else SELA, IN + 4 * (src * 2 + rho), acc(ab, rho))
    T = TMP
    A(f"v_add_u32 v{T}, s{sT1}, v3"); A(f"v_lshlrev_b32 v{T}, 6, v{T}"); A(f"v_add_u32 v{T}, s{sT2}, v{T}")
    A(f"v_cmp_eq_u32 vcc, 0, v{T}"); A(f"v_sub_u32 v{T+1}, 0x800, v{T}"); A(f"v_mov_b32 v{T+2}, 0x400"); A(f"v_cndmask_b32 v{T+1}, v{T+1}, v{T+2}, vcc")
    for rho in range(2): A(f"v_mul_u32_u24 v{T+rho}, 1152, v{T+rho}")
    O4 = f"s[{SOUT}:{SOUT+3}]"
    def store(vals, n, sks, ab):
        lo, lr, le = A.uid("lay1"), A.uid("rev"), A.uid("sdone")
        D = PST; w = "x4" if n == 8 else "x2"
        A(f"s_cmp_lg_u32 s{sLAY}, 0"); A(f"s_cbranch_scc0 {lo}_z")
        A(f"s_cmp_ge_u32 s{sJ}, 2"); A(f"s_cbranch_scc1 {lr}")
        A.label(lo + "_z")
        A("s_nop 7")
        for rho in range(2):
            for k in range(n // 2): A(f"v_cvt_pk_bf16_f32 v{D+4*rho+k}, v{vals(rho,2*k)}, v{vals(rho,2*k+1)}")
        if ab is None: A("s_mov_b32 s42, 0")
        else: A(f"s_lshl_b32 s42, s{ab}, 3")
        A(f"s_cmp_lg_u32 s{sLAY}, 0"); A(f"s_cbranch_scc1 {lo}")
        A(f"s_lshl_b32 s41, s{sks}, 11"); A("s_add_u32 s41, s41, s46"); A("s_add_u32 s41, s41, s42"); A(f"s_add_u32 s41, s41, {WS_XF2}")
        for rho in range(2): A(f"buffer_store_dword{w} {v(D+4*rho,n//2)}, v4, {W4}, s41 offen offset:{rho*KB}")
        A(f"s_branch {le}")
        A.label(lo)
        A(f"s_lshl_b32 s41, s{sks}, 6"); A("s_add_u32 s41, s41, s42")
        for rho in range(2):
            A(f"v_lshl_add_u32 v{T+2+rho}, v2, 4, v{T+rho}")
            A(f"buffer_store_dword{w} {v(D+4*rho,n//2)}, v{T+2+rho}, {O4}, s41 offen")
        A(f"s_branch {le}")
        A.label(lr)
        A(f"s_lshl_b32 s41, s{sks}, 5")
        if ab is not None: A(f"s_lshl_b32 s42, s{ab}, 2"); A("s_add_u32 s41, s41, s42")
        A(f"v_lshl_add_u32 v{T+4}, v2, 3, s41"); A(f"v_cmp_eq_u32 vcc, 0x120, v{T+4}")
        A(f"v_sub_u32 v{T+5}, {864-(n-1)}, v{T+4}"); A(f"v_sub_u32 v{T+6}, 864, v{T+4}"); A(f"v_cndmask_b32 v{T+6}, v{T+6}, v{T+4}, vcc")
        A("s_nop 3")
        for rho in range(2):
            A(f"v_cvt_pk_bf16_f32 v{D+4*rho+3}, v{vals(rho,n-1)}, v{vals(rho,0)}")
            for k in range(n // 2 - 1): A(f"v_cvt_pk_bf16_f32 v{D+4*rho+k}, v{vals(rho,n-2-2*k)}, v{vals(rho,n-3-2*k)}")
            A(f"v_lshl_add_u32 v{T+2}, v{T+5}, 1, v{T+rho}"); A(f"v_lshl_add_u32 v{T+3}, v{T+6}, 1, v{T+rho}")
            A(f"buffer_store_short v{D+4*rho+3}, v{T+2}, {O4}, 0 offen")
            A(f"buffer_store_dword{'x3' if n == 8 else ''} {v(D+4*rho,n//2-1)}, v{T+2}, {O4}, 0 offen offset:2")
            A(f"buffer_store_short_d16_hi v{D+4*rho+3}, v{T+3}, {O4}, 0 offen")
        A.label(le)
    store(lambda rho, k: acc(k >> 2, rho) + (k & 3), 8, sKS, None)
    end = A.uid("end")
    A(f"s_cmp_lg_u32 s{sQ}, s{sWV}"); A(f"s_cbranch_scc1 {end}")
    A("s_waitcnt vmcnt(0) lgkmcnt(0)")
    for src in range(5):
        for rho in range(2): A.mfma(SI + 20 + 4 * rho, SELB if rho else SELA, SI + 4 * src, None if src == 0 else SI + 20 + 4 * rho)
    A(f"s_cmp_ge_u32 s{sJ}, 2"); A("s_cselect_b32 s43, 13, 4"); A(f"s_and_b32 s44, s{sJ}, 1")
    store(lambda rho, k: SI + 20 + 4 * rho + k, 4, 43, 44)
    A.label(end)
    A("s_endpgm")

def kernels_b(A, n0, n1):
    lb = A.uid("ffn")
    kernel_begin(A, n0)
    A(f"s_mov_b32 s{sLAY}, 0"); A("s_cmp_lt_u32 s2, 256"); A(f"s_cbranch_scc1 {lb}"); A("s_endpgm")
    kernel_desc(A, n0)
    kernel_begin(A, n1)
    A(f"s_mov_b32 s{sLAY}, 1"); A("s_cmp_lt_u32 s2, 256"); A(f"s_cbranch_scc1 {lb}"); A("s_endpgm")
    A.label(lb)
    body(A)
    kernel_desc(A, n1)
```

```python
from asmlib import *
KB = 1024
WS_W    = 0x0000000
WSTR    = 972 * KB
WS_TAB  = 0x1000000
WS_CS   = 0x10B0000
WS_FLAG = 0x10C0000
WS_Z    = 0x1100000
WS_XF0  = 0x1300000
WS_XF2  = 0x1600000
WS_RES  = 0x1900000
WS_P    = 0x1C00000
WS_PS   = 0x2200000
WS_H    = 0x2400000
WS_DBG  = 0x4000000
WS_SIZE = 0x10000000
XBYTES = 2048 * 576 * 2

class K(Asm):
    def __init__(self):
        super().__init__()
        self.reset()
    def reset(self):
        self.vmq = []; self.vmdone = 0; self.lgq = []; self.lgdone = 0
    def vm(self, ins, tag=None):
        self(ins); self.vmq.append(tag)
    def lg(self, ins, tag=None):
        self(ins); self.lgq.append(tag)
    def _need(self, q, done, tags, mx):
        if not isinstance(tags, (list, set)): tags = [tags]
        idx = [i for i, t in enumerate(q) if t in tags]
        assert all(t in q for t in tags), ("tag not issued", tags)
        last = max(idx) + 1
        if last <= done: return None, done
        n = len(q) - last
        if n > mx: n = mx; last = len(q) - n
        return n, last
    def wait(self, vm=None, lg=None):
        s = []
        if vm is not None:
            n, self.vmdone = self._need(self.vmq, self.vmdone, vm, 63)
            if n is not None: s.append(f"vmcnt({n})")
        if lg is not None:
            n, self.lgdone = self._need(self.lgq, self.lgdone, lg, 15)
            if n is not None: s.append(f"lgkmcnt({n})")
        if s: self("s_waitcnt " + " ".join(s))
    def waitall(self, vm=True, lg=True):
        s = []
        if vm: s.append("vmcnt(0)"); self.vmdone = len(self.vmq)
        if lg: s.append("lgkmcnt(0)"); self.lgdone = len(self.lgq)
        self("s_waitcnt " + " ".join(s))
    def mfma(self, d, a_, b_, c):
        self(f"v_mfma_f32_16x16x32_bf16 {r(d,4)}, {r(a_,4)}, {r(b_,4)}, {'0' if c is None else r(c,4)}")

def wave_rows(A, c, w, t2, t1b, tmp):
    A(f"s_lshr_b32 s{tmp}, s{w}, 1"); A(f"s_lshl_b32 s{t2}, s{tmp}, 5"); A(f"s_add_u32 s{t2}, s{t2}, s{c}")
    A(f"s_and_b32 s{t1b}, s{w}, 1"); A(f"s_lshl_b32 s{t1b}, s{t1b}, 4")
    l = A.uid("rows")
    A(f"s_cmp_lg_u32 s{c}, 0"); A(f"s_cbranch_scc1 {l}")
    A(f"s_lshl_b32 s{t2}, s{w}, 5"); A(f"s_cmp_lg_u32 s{tmp}, 0"); A(f"s_cselect_b32 s{t2}, 16, s{t2}")
    A(f"s_cmp_eq_u32 s{w}, 3"); A(f"s_cselect_b32 s{t1b}, 16, 0")
    A.label(l)
```

```python
import sys
from kb import *
import hazard, k_a
def build(path, which="all"):
    A = K()
    hdr = [l for l in open("interleave_layers__spectral_fnet__swiglu_ffn__prompt.s.ref").read().split("\n") if l.startswith(";") and "@launch" not in l and "Override" not in l and "grid=ceil" not in l]
    for l in hdr: A.raw(l)
    launches = [("fnet0_kernel", 256, k_a.LDS_A)]
    if which == "a": launches += [("fnet1_kernel", 144, k_a.LDS_A)]
    else:
        import k_b
        launches += [("ffn0_kernel", 256, k_b.LDS_B), ("fnet1_kernel", 144, k_a.LDS_A), ("ffn1_kernel", 256, k_b.LDS_B)]
    for n, g, lds in launches: A.raw(f"; @launch kernel={n} grid=({g},1,1) block=(256,1,1) lds={lds}")
    A.raw('.amdgcn_target "amdgcn-amd-amdhsa--gfx950"')
    k_a.kernel_a0(A, "fnet0_kernel"); k_a.kernel_a1(A, "fnet1_kernel")
    if which != "a": k_b.kernels_b(A, "ffn0_kernel", "ffn1_kernel")
    rep = []
    lines, tot = hazard.pad(A.lines, rep)
    open(path, "w").write("\n".join(lines) + "\n")
    print("wait states inserted:", tot, "at", len(rep), "places;", len(lines), "lines")
    return rep
if __name__ == "__main__":
    rep = build(sys.argv[1], sys.argv[2] if len(sys.argv) > 2 else "all")
    if "-v" in sys.argv:
        for x in rep: print(x)
```
